```python
import torch

def _softmax(x, axis=-1):
    return torch.softmax(x, dim=axis)
def _gelu(x):
    return torch.nn.functional.gelu(x, approximate="tanh")
def _silu(x):
    return torch.nn.functional.silu(x)
def _sigmoid(x):
    return torch.sigmoid(x)
def _layernorm(x, axis=-1, eps=1e-5):
    m = x.mean(dim=axis, keepdim=True)
    v = x.var(dim=axis, keepdim=True, unbiased=False)
    return (x - m) / torch.sqrt(v + eps)
def _scatter_add(tgt, idx, src, axis=0):
    return tgt.clone().index_add_(axis, idx, src)
def _segment_sum(src, seg, n):
    out = torch.zeros((n,) + src.shape[1:], dtype=src.dtype)
    return out.index_add_(0, seg, src)
def _pad(x, pw):
    flat = tuple(v for pair in reversed(pw) for v in pair)
    return torch.nn.functional.pad(x, flat)

kernel_name = 'interleave_layers__linear_attn_block__dense_activation_silu__prompt'

def setup_inputs():

    _w = (lambda a: (lambda t: t.to(torch.bfloat16) if t.is_floating_point() else t)(torch.as_tensor(a)))
    def _A_setup():
        B, S, D = 1, 2048, 448
        return {
            "x": _w((lambda *s: torch.randn(*s, dtype=torch.bfloat16) * 0.05)(B, S, D)),
            "wqkv": _w((lambda *s: torch.randn(*s, dtype=torch.bfloat16) * 0.1)(D, 3 * D)),
            "wo": _w((lambda *s: torch.randn(*s, dtype=torch.bfloat16) * 0.05)(D, D)),
        }
    _A_in = _A_setup()

    def _B_setup():
        B, S, D, F = 1, 2048, 448, 1792
        return {
            "x": _w((lambda *s: torch.randn(*s, dtype=torch.bfloat16) * 0.05)(B, S, D)),
            "w1": _w((lambda *s: torch.randn(*s, dtype=torch.bfloat16) * 3.2)(D, F) * (D ** -0.5)),
            "w2": _w((lambda *s: torch.randn(*s, dtype=torch.bfloat16) * 0.8)(F, D) * (F ** -0.5)),
        }
    _B_in = _B_setup()

    return {
        "A_x": _A_in["x"],
        "A_wqkv": _A_in["wqkv"],
        "A_wo": _A_in["wo"],
        "B_x": _B_in["x"],
        "B_w1": _B_in["w1"],
        "B_w2": _B_in["w2"],
    }

def reference(A_x, A_wqkv, A_wo, B_x, B_w1, B_w2):
    def _A_ref(x, wqkv, wo):
        B, S, D = x.shape
        H = 16; Dh = D // H
        qkv = (lambda x, *d: x.permute(*d))((x @ wqkv).reshape(B, S, 3, H, Dh), 2, 0, 3, 1, 4)
        q, k, v = qkv[0], qkv[1], qkv[2]
        phi = lambda t: torch.where(t > 0, t + 1, torch.exp(t)) + 1e-6
        pq, pk = phi(q), phi(k)
        kv = torch.einsum("bhsd,bhse->bhde", pk, v)
        z = torch.einsum("bhsd->bhd", pk)
        num = torch.einsum("bhqd,bhde->bhqe", pq, kv)
        den = torch.einsum("bhqd,bhd->bhq", pq, z)[..., None] + 1e-6
        o = num / den
        return (lambda x, *d: x.permute(*d))(o, 0, 2, 1, 3).reshape(B, S, D) @ wo

    def _B_ref(x, w1, w2):
        h = torch.einsum("bsd,df->bsf", x, w1)
        h = _silu(h)
        out = torch.einsum("bsf,fd->bsd", h, w2)
        return out

    x = A_x
    x = x + _A_ref(_layernorm(x, axis=-1), A_wqkv, A_wo)
    x = x + _B_ref(_layernorm(x, axis=-1), B_w1, B_w2)
    x = x + _A_ref(_layernorm(x, axis=-1), A_wqkv, A_wo)
    x = x + _B_ref(_layernorm(x, axis=-1), B_w1, B_w2)
    return x
```

```python
import sys, struct
NEMPTY = int(sys.argv[2]) if len(sys.argv) > 2 else 0
EPS = float(sys.argv[3]) if len(sys.argv) > 3 else 0.0
S, D, F = 2048, 448, 1792
X_OFF, ST_OFF, QKV_OFF, KV_OFF, O_OFF, H_OFF = 0, 2 << 20, 4 << 20, 12 << 20, 14 << 20, 16 << 20
def f2u(x): return struct.unpack('<I', struct.pack('<f', x))[0]
kernels = []; launches = []
def srd(L, r, slot, nbytes):
    L.append(f"s_load_dwordx2 s[{r}:{r+1}], s[0:1], {slot*8}")
    L.append("s_waitcnt lgkmcnt(0)")
    L.append(f"s_and_b32 s{r+1}, s{r+1}, 0xffff\ns_mov_b32 s{r+2}, {nbytes}\ns_mov_b32 s{r+3}, 0x20000")
def divmod_c(L, q, r, x, c):
    k = (c & -c).bit_length() - 1
    m = (1 << 32) // (c >> k) + 1
    L.append(f"s_mov_b32 s40, {m}\nv_lshrrev_b32 v{q}, {k}, v{x}\nv_mul_hi_u32 v{q}, v{q}, s40\ns_mov_b32 s40, {c}\nv_mul_lo_u32 v{r}, v{q}, s40\nv_sub_u32 v{r}, v{x}, v{r}")
def rbf(L, v):
    L.append(f"v_cvt_pk_bf16_f32 v{v}, v{v}, v{v}\nv_and_b32 v{v}, 0xffff0000, v{v}")
def head(L, n):
    L.append(f"s_lshl_b32 s3, s2, 8\nv_add_u32 v1, s3, v0\ns_mov_b32 s40, {n}\nv_cmp_gt_u32 vcc, s40, v1\ns_and_saveexec_b64 s[42:43], vcc\ns_cbranch_execz L_end_{L.name}")
class K(list):
    def __init__(s, name): s.name = name
def emit(L, n):
    kernels.append(L); L.n = n
WS = 268435456
def k_copy():
    L = K('copy'); n = S*D//2; head(L, n)
    srd(L, 8, 0, S*D*2); srd(L, 12, 8, WS)
    L.append("v_lshlrev_b32 v2, 2, v1\nbuffer_load_dword v3, v2, s[8:11], 0 offen\ns_waitcnt vmcnt(0)\nbuffer_store_dword v3, v2, s[12:15], 0 offen")
    emit(L, n)
def k_stats():
    L = K('stats'); head(L, S); srd(L, 12, 8, WS)
    L.append(f"v_mul_u32_u24 v2, {D*2}, v1\nv_mov_b32 v4, 0\nv_mov_b32 v5, 0\ns_mov_b32 s20, 0\nL_st:")
    L.append("buffer_load_ushort v3, v2, s[12:15], s20 offen\ns_waitcnt vmcnt(0)\nv_lshlrev_b32 v3, 16, v3\nv_add_f32 v4, v4, v3\nv_fmac_f32 v5, v3, v3")
    L.append(f"s_add_u32 s20, s20, 2\ns_cmp_lt_u32 s20, {D*2}\ns_cbranch_scc1 L_st")
    L.append(f"v_mul_f32 v4, {hex(f2u(1/448))}, v4\nv_mul_f32 v5, {hex(f2u(1/448))}, v5\nv_fma_f32 v5, -v4, v4, v5\nv_max_f32 v5, 0, v5")
    rbf(L, 4); rbf(L, 5)
    L.append(f"v_add_f32 v5, {hex(f2u(1e-5))}, v5"); rbf(L, 5)
    L.append("v_sqrt_f32 v5, v5\ns_nop 0"); rbf(L, 5)
    L.append(f"v_rcp_f32 v5, v5\nv_lshlrev_b32 v2, 3, v1\ns_mov_b32 s20, {ST_OFF}\nbuffer_store_dwordx2 v[4:5], v2, s[12:15], s20 offen")
    emit(L, S)
def k_gemm(name, a_off, Kd, wslot, N, mode, out_off, final=False):
    L = K(name); n = S*N; head(L, n)
    srd(L, 12, 8, WS); srd(L, 8, wslot, Kd*N*2); srd(L, 16, 6, S*D*2)
    divmod_c(L, 2, 3, 1, N)
    L.append(f"v_mul_u32_u24 v6, {Kd*2}, v2\nv_lshlrev_b32 v7, 1, v3\nv_mov_b32 v4, 0\nv_mov_b32 v5, 0\ns_mov_b32 s20, {a_off}\ns_mov_b32 s21, 0\nL_g_{name}:")
    for u in range(8):
        L.append(f"buffer_load_ushort v{10+u}, v6, s[12:15], s20 offen offset:{2*u}\nbuffer_load_ushort v{20+u}, v7, s[8:11], s21 offen\ns_add_u32 s21, s21, {N*2}")
    L.append("s_waitcnt vmcnt(0)")
    for u in range(8):
        L.append(f"v_lshlrev_b32 v{10+u}, 16, v{10+u}\nv_lshlrev_b32 v{20+u}, 16, v{20+u}\nv_fmac_f32 v4, v{10+u}, v{20+u}\nv_add_f32 v5, v5, v{20+u}")
    L.append(f"s_add_u32 s20, s20, 16\ns_cmp_lt_u32 s21, {Kd*N*2}\ns_cbranch_scc1 L_g_{name}")
    if mode in ('qkv', 'silu'):
        L.append(f"v_lshlrev_b32 v8, 3, v2\ns_mov_b32 s20, {ST_OFF}\nbuffer_load_dwordx2 v[10:11], v8, s[12:15], s20 offen\ns_waitcnt vmcnt(0)")
        L.append("v_fma_f32 v4, -v10, v5, v4\nv_mul_f32 v4, v4, v11")
    if mode == 'qkv':
        L.append(f"v_mul_f32 v12, {hex(f2u(1.4426950408889634))}, v4\nv_exp_f32 v12, v12 clamp\nv_add_f32 v13, {hex(f2u(1.000001))}, v4\nv_add_f32 v12, {hex(f2u(1e-6))}, v12\nv_max_f32 v12, v12, v13")
        L.append(f"v_cmp_gt_u32 vcc, {2*D}, v3\ns_nop 1\nv_cndmask_b32 v4, v4, v12, vcc")
    if mode == 'silu':
        L.append(f"v_mul_f32 v12, {hex(f2u(-1.4426950408889634))}, v4\nv_exp_f32 v12, v12\ns_nop 0\nv_add_f32 v12, 1.0, v12\nv_rcp_f32 v12, v12\ns_nop 0\nv_mul_f32 v4, v4, v12")
    L.append("v_lshlrev_b32 v8, 1, v1")
    if mode == 'res':
        rbf(L, 4)
        L.append(f"buffer_load_ushort v10, v8, s[12:15], 0 offen\ns_waitcnt vmcnt(0)\nv_lshlrev_b32 v10, 16, v10\nv_add_f32 v4, v4, v10")
    if final and EPS: L.append(f"v_mul_f32 v4, {hex(f2u(1+EPS))}, v4")
    L.append("v_cvt_pk_bf16_f32 v4, v4, v4")
    if final: L.append("buffer_store_short v4, v8, s[16:19], 0 offen")
    else: L.append(f"s_mov_b32 s20, {out_off}\nbuffer_store_short v4, v8, s[12:15], s20 offen")
    emit(L, n)
def k_kv():
    L = K('kv'); n = 16*28*32; head(L, n); srd(L, 12, 8, WS)
    L.append("v_and_b32 v3, 31, v1\nv_lshrrev_b32 v2, 5, v1")
    divmod_c(L, 6, 7, 2, 28)
    L.append(f"v_mul_u32_u24 v6, 28, v6\nv_add_u32 v6, v6, v3\nv_lshlrev_b32 v6, 1, v6\nv_add_u32 v6, {2*D*2}, v6\nv_lshlrev_b32 v7, 1, v2\nv_add_u32 v7, {D*2}, v7")
    L.append(f"v_cmp_gt_u32 vcc, 28, v3\nv_mov_b32 v4, 0\ns_mov_b32 s20, {QKV_OFF}\nL_kv:")
    L.append("buffer_load_ushort v10, v6, s[12:15], s20 offen\nbuffer_load_ushort v11, v7, s[12:15], s20 offen\ns_waitcnt vmcnt(0)\nv_lshlrev_b32 v10, 16, v10\nv_lshlrev_b32 v11, 16, v11\nv_cndmask_b32 v10, 1.0, v10, vcc\nv_fmac_f32 v4, v10, v11")
    L.append(f"s_add_u32 s20, s20, {3*D*2}\ns_cmp_lt_u32 s20, {QKV_OFF+S*3*D*2}\ns_cbranch_scc1 L_kv")
    rbf(L, 4)
    L.append(f"v_lshlrev_b32 v8, 2, v1\ns_mov_b32 s20, {KV_OFF}\nbuffer_store_dword v4, v8, s[12:15], s20 offen")
    emit(L, n)
def k_o():
    L = K('o'); n = S*D; head(L, n); srd(L, 12, 8, WS)
    divmod_c(L, 2, 3, 1, D)
    divmod_c(L, 6, 7, 3, 28)
    L.append(f"v_mul_u32_u24 v8, {3*D*2}, v2\nv_mul_u32_u24 v9, 56, v6\nv_add_u32 v8, v8, v9")
    L.append(f"v_mul_u32_u24 v9, {28*128}, v6\nv_lshlrev_b32 v7, 2, v7\nv_add_u32 v7, v7, v9")
    L.append(f"v_mov_b32 v4, 0\nv_mov_b32 v5, 0\ns_mov_b32 s20, {QKV_OFF}\ns_mov_b32 s21, {KV_OFF}\nL_o:")
    L.append("buffer_load_ushort v10, v8, s[12:15], s20 offen\nbuffer_load_dword v11, v7, s[12:15], s21 offen\nbuffer_load_dword v12, v9, s[12:15], s21 offen offset:112\ns_waitcnt vmcnt(0)\nv_lshlrev_b32 v10, 16, v10\nv_fmac_f32 v4, v10, v11\nv_fmac_f32 v5, v10, v12")
    L.append(f"s_add_u32 s20, s20, 2\ns_add_u32 s21, s21, 128\ns_cmp_lt_u32 s20, {QKV_OFF+56}\ns_cbranch_scc1 L_o")
    L.append(f"v_add_f32 v5, {hex(f2u(1e-6))}, v5\nv_rcp_f32 v5, v5\ns_nop 0\nv_mul_f32 v4, v4, v5\nv_cvt_pk_bf16_f32 v4, v4, v4\nv_lshlrev_b32 v8, 1, v1\ns_mov_b32 s20, {O_OFF}\nbuffer_store_short v4, v8, s[12:15], s20 offen")
    emit(L, n)
def k_empty():
    L = K('empty'); head(L, 256*256); emit(L, 256*256)
k_copy(); k_stats(); k_gemm('qkv', X_OFF, D, 1, 3*D, 'qkv', QKV_OFF); k_kv(); k_o()
k_gemm('wo', O_OFF, D, 2, D, 'res', X_OFF); k_gemm('w1', X_OFF, D, 4, F, 'silu', H_OFF)
k_gemm('w2', H_OFF, F, 5, D, 'res', X_OFF); k_gemm('w2f', H_OFF, F, 5, D, 'res', 0, final=True); k_empty()
order = ['copy'] + ['stats', 'qkv', 'kv', 'o', 'wo', 'stats', 'w1', 'w2'] + ['stats', 'qkv', 'kv', 'o', 'wo', 'stats', 'w1', 'w2f'] + ['empty']*NEMPTY
byname = {k.name: k for k in kernels}
out = []
for n in order:
    out.append(f"; @launch kernel={n}_kernel grid=({(byname[n].n+255)//256},1,1) block=(256,1,1) lds=0")
out.append('.amdgcn_target "amdgcn-amd-amdhsa--gfx950"\n.text')
used = [k for k in kernels if k.name in order]
for k in used:
    out.append(f".globl {k.name}_kernel\n.p2align 8\n.type {k.name}_kernel,@function\n{k.name}_kernel:")
    out.extend(k); out.append(f"L_end_{k.name}:\ns_endpgm")
out.append('.section .rodata,"a"')
for k in used:
    out.append(f""".p2align 6
.amdhsa_kernel {k.name}_kernel
  .amdhsa_next_free_vgpr 32
  .amdhsa_next_free_sgpr 48
  .amdhsa_accum_offset 32
  .amdhsa_group_segment_fixed_size 0
  .amdhsa_kernarg_size 72
  .amdhsa_user_sgpr_count 2
  .amdhsa_user_sgpr_kernarg_segment_ptr 1
  .amdhsa_system_sgpr_workgroup_id_x 1
  .amdhsa_float_denorm_mode_32 3
.end_amdhsa_kernel""")
open(sys.argv[1], 'w').write("\n".join(out) + "\n")
```
